```python
import torch

def _softmax(x, axis=-1):
    return torch.softmax(x, dim=axis)
def _gelu(x):
    return torch.nn.functional.gelu(x, approximate="tanh")
def _silu(x):
    return torch.nn.functional.silu(x)
def _sigmoid(x):
    return torch.sigmoid(x)
def _layernorm(x, axis=-1, eps=1e-5):
    m = x.mean(dim=axis, keepdim=True)
    v = x.var(dim=axis, keepdim=True, unbiased=False)
    return (x - m) / torch.sqrt(v + eps)
def _scatter_add(tgt, idx, src, axis=0):
    return tgt.clone().index_add_(axis, idx, src)
def _segment_sum(src, seg, n):
    out = torch.zeros((n,) + src.shape[1:], dtype=src.dtype)
    return out.index_add_(0, seg, src)
def _pad(x, pw):
    flat = tuple(v for pair in reversed(pw) for v in pair)
    return torch.nn.functional.pad(x, flat)

kernel_name = 'sequential_preLN__sliding_block_cached__glu_gated_glu__decode'

def setup_inputs():

    _w = (lambda a: (lambda t: t.to(torch.bfloat16) if t.is_floating_point() else t)(torch.as_tensor(a)))
    def _A_setup():
        B, Sq, D = 8, 1, 512
        Hq, Hkv, Sk, Dh = 32, 8, 4096, 128
        assert Hq % Hkv == 0, (Hq, Hkv)
        return {
            "x": _w((lambda *s: torch.randn(*s, dtype=torch.bfloat16) * 0.05)(B, Sq, D)),
            "k_cache": _w((lambda *s: torch.randn(*s, dtype=torch.bfloat16) * 3.2)(B, Hkv, Sk, Dh)),
            "v_cache": _w((lambda *s: torch.randn(*s, dtype=torch.bfloat16) * 0.4)(B, Hkv, Sk, Dh)),
            "wq": _w((lambda *s: torch.randn(*s, dtype=torch.bfloat16) * 3.2)(D, Hq * Dh) * (D ** -0.5)),
            "wo": _w((lambda *s: torch.randn(*s, dtype=torch.bfloat16) * 0.4)(Hq * Dh, D) * ((Hq * Dh) ** -0.5)),
        }
    _A_in = _A_setup()

    def _B_setup():
        B, S, D, F = 8, 1, 512, 1792
        return {
            "x": _w((lambda *s: torch.randn(*s, dtype=torch.bfloat16) * 0.05)(B, S, D)),
            "w_gate": _w((lambda *s: torch.randn(*s, dtype=torch.bfloat16) * 0.1)(D, F)),
            "w_up": _w((lambda *s: torch.randn(*s, dtype=torch.bfloat16) * 0.05)(D, F)),
            "w_down": _w((lambda *s: torch.randn(*s, dtype=torch.bfloat16) * 0.05)(F, D)),
        }
    _B_in = _B_setup()

    return {
        "A_x": _A_in["x"],
        "A_k_cache": _A_in["k_cache"],
        "A_v_cache": _A_in["v_cache"],
        "A_wq": _A_in["wq"],
        "A_wo": _A_in["wo"],
        "B_x": _B_in["x"],
        "B_w_gate": _B_in["w_gate"],
        "B_w_up": _B_in["w_up"],
        "B_w_down": _B_in["w_down"],
    }

def reference(A_x, A_k_cache, A_v_cache, A_wq, A_wo, B_x, B_w_gate, B_w_up, B_w_down):
    def _A_ref(x, k_cache, v_cache, wq, wo):
        B, Sq, D = x.shape
        Hq, Dh = 32, 128
        Hkv, Sk = k_cache.shape[1], k_cache.shape[2]
        W = min(4096, max(256, Sk // 4))
        rep = Hq // Hkv
        q = (lambda x, *d: x.permute(*d))((x @ wq).reshape(B, Sq, Hq, Dh), 0, 2, 1, 3)
        k = (lambda x, n, axis: torch.repeat_interleave(x, n, dim=axis))(k_cache[:, :, Sk - W:, :], rep, axis=1)
        v = (lambda x, n, axis: torch.repeat_interleave(x, n, dim=axis))(v_cache[:, :, Sk - W:, :], rep, axis=1)
        scores = torch.einsum("bhqd,bhkd->bhqk", q, k) * (Dh ** -0.5)
        p = _softmax(scores, axis=-1)
        o = torch.einsum("bhqk,bhkd->bhqd", p, v)
        return (lambda x, *d: x.permute(*d))(o, 0, 2, 1, 3).reshape(B, Sq, Hq * Dh) @ wo

    def _B_ref(x, w_gate, w_up, w_down):
        g = torch.einsum("bsd,df->bsf", x, w_gate)
        u = torch.einsum("bsd,df->bsf", x, w_up)
        h = _sigmoid(g) * u
        return torch.einsum("bsf,fd->bsd", h, w_down)

    x = A_x
    h = x + _A_ref(_layernorm(x, axis=-1), A_k_cache, A_v_cache, A_wq, A_wo)
    h2 = h + _B_ref(_layernorm(h, axis=-1), B_w_gate, B_w_up, B_w_down)
    return h2
```

```python
import re
TRANS=('v_exp_f32','v_log_f32','v_rcp_f32','v_rsq_f32','v_sqrt_f32','v_sin_f32','v_cos_f32')
def regs(tok):
    tok=tok.strip()
    tok=tok.lstrip('-').strip('|')
    m=re.fullmatch(r'([vs])\[(\d+):(\d+)\]',tok)
    if m: return [(m.group(1),i) for i in range(int(m.group(2)),int(m.group(3))+1)]
    m=re.fullmatch(r'([vs])(\d+)',tok)
    if m: return [(m.group(1),int(m.group(2)))]
    if tok=='vcc': return [('s','vcc')]
    if tok=='m0': return [('s','m0')]
    if tok=='exec': return [('s','exec')]
    return []
def parse(line):
    s=line.split(';')[0].strip()
    if not s or s.endswith(':') or s.startswith('.'): return None
    p=s.split(None,1); op=p[0]; rest=p[1] if len(p)>1 else ''
    ops=[]
    for t in rest.split(','):
        t=t.strip()
        if t: ops.append(t.split()[0])
    return op,ops,rest
def hazard_pass(lines):
    out=[]; ev=[]
    pos=0
    for ln in lines:
        pr=parse(ln)
        if pr is None: out.append(ln); continue
        op,ops,rest=pr
        if op=='s_nop':
            out.append(ln); pos+=int(ops[0])+1; continue
        mf=op.startswith('v_mfma'); va=op.startswith('v_') and not mf
        vm=op.startswith('buffer_') or op.startswith('global_'); ds=op.startswith('ds_')
        R=[regs(t) for t in ops]
        allr=[r for x in R for r in x]
        dst=[];src=[]
        if mf: dst=R[0]; src=[r for x in R[1:] for r in x]
        elif va:
            dst=R[0]; src=[r for x in R[1:] for r in x]
            if 'permlane' in op and 'swap' in op: dst=R[0]+R[1]; src=R[0]+R[1]
            if op.startswith('v_cndmask') and len(ops)==3: src=src+[('s','vcc')]
            if op.startswith('v_fmac') or op.startswith('v_writelane'): src=src+R[0]
        elif vm:
            if 'load' in op and ' lds' not in (' '+rest): dst=R[0]; src=[r for x in R[1:] for r in x]
            else: src=allr
        elif ds:
            if op.startswith('ds_read'): dst=R[0]; src=[r for x in R[1:] for r in x]
            else: src=allr
        need=0
        dpp=('dpp' in op) or ('row_' in rest) or ('quad_perm' in rest)
        perml='permlane' in op
        rl=op.startswith('v_readfirstlane') or op.startswith('v_readlane')
        for (p,k,r,info) in ev:
            d=pos-p-1
            req=0
            if k=='valu_v':
                if mf and r in src: req=2
                if va and (dpp or perml) and r in src: req=2
                if rl and r in src: req=1
            if k=='trans' and va and op not in TRANS and r in src: req=max(req,1)
            if k=='trans' and (mf) and r in src: req=2
            if k=='valu_s':
                if va and r in src: req=2
                if (op.startswith('v_readlane') or op.startswith('v_writelane')) and r in src: req=4
                if vm and r in src: req=5
            if k=='mfma_d':
                if mf:
                    if r in R[1] or r in R[2]: req=8
                    elif r in R[3]: req=0 if R[3]==info else 6
                elif (va or vm or ds) and (r in src or r in dst): req=8
            if k=='mfma_c' and va and r in dst: req=3
            if k=='st_data' and (va or mf) and r in dst: req=2
            if k=='m0' and vm and ' lds' in (' '+rest): req=1
            need=max(need,req-d)
        if need>0:
            out.append('  s_nop %d'%(need-1)); pos+=need
        out.append(ln)
        if va:
            for r in dst:
                if r[0]=='v':
                    ev.append((pos,'valu_v',r,None))
                    if op in TRANS: ev.append((pos,'trans',r,None))
                else: ev.append((pos,'valu_s',r,None))
        if mf:
            for r in dst: ev.append((pos,'mfma_d',r,R[0]))
            for r in R[3]: ev.append((pos,'mfma_c',r,None))
        if vm and 'store' in op and ('x4' in op or 'x3' in op):
            for r in R[0]: ev.append((pos,'st_data',r,None))
        if op.startswith('s_') and ops and ops[0]=='m0': ev.append((pos,'m0',('s','m0'),None))
        pos+=1
        ev=[e for e in ev if pos-e[0]<=10]
    return out
```

```python
import sys, os
sys.path.insert(0, os.path.dirname(__file__))
from asmlib import hazard_pass
KN='sequential_preLN__sliding_block_cached__glu_gated_glu__decode'
opt=dict(D=24, PROF=0, SLP=1, GSLP=2, ROTM=2654435, ROTS=9)
for a in sys.argv[2:]:
    k,v=a.split('='); opt[k]=int(v)
D=opt['D']; PROF=opt['PROF']
L=[]
def A(s):
    for ln in s.strip('\n').split('\n'):
        ln=ln.strip()
        if not ln: continue
        L.append(ln if ln.endswith(':') else '  '+ln)
_lab=[0]
def lab(p='L'):
    _lab[0]+=1; return '%s_%d'%(p,_lab[0])
EPOCH=0; FLAGS=0x1000; QBUF=0x10000; LSE=0x90000; OBUF=0xA0000; ABUF=0x100000; HBUF=0x180000
CSUM=0x184000; GBUF=0x1A0000; CBUF=0x240000; DBG=0x300000; WSSZ=0x400000
KB=0; VB=0x10000; WB=0x20000; XN=0x24000; PB=0x24000; QL=0x26100; MX=0x26580; LS=0x26600; HH=0x26680; FL=0x26C00
GUB=0; DNB=0x4000
PROG,CXN,CPUB,WQD,QRDY,CMX,CP,ALLOK,CA,HGO,CG,CC=[4*i for i in range(12)]
T_WQ=16+D; T_K=80+D; T_WO=96+D; T_V0=96+D; T_GU=176+D; T_DN=184+D
OOB=0x80000000
sW='s3'; sX='s28'; sJ='s29'; sB='s30'; sT='s31'; sT2='s32'; sT3='s33'; sROT='s34'; sPH='s35'
WS='s[36:39]'; XS='s[40:43]'; OS='s[44:47]'; TAG='s[48:49]'
sO='s50'; sA='s51'; sC='s52'; sG='s53'; sCS='s54'; sQ='s55'; sGAM='s56'; sU='s57'; sU2='s58'; sU3='s59'
vL='v0'; vC='v1'; vG='v2'; vFL='v3'; vONE='v4'; vTS='v5'; vOst='v6'; vR0='v7'; vR1='v8'; vR2='v9'; vWrd='v10'; vT='v11'
vX0='v12'; vX1='v13'; vRL='v14'; vT2='v15'
def v(n,k=1): return 'v%d'%n if k==1 else 'v[%d:%d]'%(n,n+k-1)
def TS(n):
    if PROF: A(f's_memrealtime s[60:61]\ns_waitcnt lgkmcnt(0)\nv_writelane_b32 {vTS}, s60, {n}')
def srd(d,lo,size):
    A(f's_mov_b32 s{d}, s{lo}\ns_mov_b32 s{d+1}, s{lo+1}\ns_mov_b32 s{d+2}, {size}\ns_mov_b32 s{d+3}, 0x20000')
def lwait(off,tgt,slp=None):
    slp=opt['SLP'] if slp is None else slp
    a=lab('W'); b=lab('W')
    A(f'''{a}:
    ds_read_b32 {vT}, {vFL} offset:{off}
    s_waitcnt lgkmcnt(0)
    v_readfirstlane_b32 {sT}, {vT}
    s_cmp_ge_u32 {sT}, {tgt}
    s_cbranch_scc1 {b}''')
    if slp: A(f's_sleep {slp}')
    A(f'''s_sub_u32 {sB}, {sB}, 1
    s_cmp_gt_i32 {sB}, 0
    s_cbranch_scc1 {a}
    {b}:''')
def sig(off):
    A(f'''s_mov_b64 exec, 1
    ds_add_u32 {vFL}, {vONE} offset:{off}
    s_mov_b64 exec, -1''')
def gpoll(loads, rlist, between=None):
    a=lab('P'); b=lab('P')
    A(f'{a}:'); A(loads)
    if between: between()
    A('s_waitcnt vmcnt(0)')
    r=list(rlist)
    if len(r)==1: A(f'v_mov_b32 {vT}, v{r[0]}'); r=[]
    elif len(r)==2: A(f'v_max_u32 {vT}, v{r[0]}, v{r[1]}'); r=[]
    else: A(f'v_max3_u32 {vT}, v{r[0]}, v{r[1]}, v{r[2]}'); r=r[3:]
    while len(r)>=2: A(f'v_max3_u32 {vT}, {vT}, v{r[0]}, v{r[1]}'); r=r[2:]
    if r: A(f'v_max_u32 {vT}, {vT}, v{r[0]}')
    A(f'''v_cmp_eq_u32 vcc, -1, {vT}
    s_cbranch_vccz {b}''')
    if opt['GSLP']: A(f's_sleep {opt["GSLP"]}')
    A(f'''s_sub_u32 {sB}, {sB}, 8
    s_cmp_gt_i32 {sB}, 0
    s_cbranch_scc1 {a}
    {b}:''')
DP='row_mask:0xf bank_mask:0xf'
def xrow(r,t,op):
    A(f'''v_mov_b32 {t}, {r}
    v_permlane16_swap_b32 {r}, {t}
    {op} {r}, {r}, {t}
    v_mov_b32 {t}, {r}
    v_permlane32_swap_b32 {r}, {t}
    {op} {r}, {r}, {t}''')
def allred(r,t):
    for k in (8,4,2,1): A(f'v_add_f32_dpp {r}, {r}, {r} row_ror:{k} {DP}')
    xrow(r,t,'v_add_f32')
def unpack8(src,dst):
    for i in range(4):
        A(f'v_lshlrev_b32 v{dst+2*i}, 16, v{src+i}\nv_and_b32 v{dst+2*i+1}, 0xffff0000, v{src+i}')
def stats(a,m,rs,t,t2):
    A(f'''v_add_f32 v{m}, v{a}, v{a+1}
    v_add_f32 v{t}, v{a+2}, v{a+3}
    v_add_f32 v{t2}, v{a+4}, v{a+5}
    v_add_f32 v{rs}, v{a+6}, v{a+7}
    v_add_f32 v{m}, v{m}, v{t}
    v_add_f32 v{t2}, v{t2}, v{rs}
    v_add_f32 v{m}, v{m}, v{t2}''')
    allred(f'v{m}',f'v{t}')
    A(f'v_mul_f32 v{m}, 0x3b000000, v{m}')
    A(f'v_sub_f32 v{t}, v{a}, v{m}\nv_mul_f32 v{rs}, v{t}, v{t}')
    for i in range(1,8): A(f'v_sub_f32 v{t}, v{a+i}, v{m}\nv_fmac_f32 v{rs}, v{t}, v{t}')
    allred(f'v{rs}',f'v{t}')
    A(f'''v_mul_f32 v{rs}, 0x3b000000, v{rs}
    v_cvt_pk_bf16_f32 v{t}, v{m}, v{rs}
    v_lshlrev_b32 v{m}, 16, v{t}
    v_and_b32 v{rs}, 0xffff0000, v{t}
    v_add_f32 v{rs}, 0x3727c5ac, v{rs}
    v_cvt_pk_bf16_f32 v{rs}, v{rs}, v{rs}
    v_lshlrev_b32 v{rs}, 16, v{rs}
    v_sqrt_f32 v{rs}, v{rs}
    v_cvt_pk_bf16_f32 v{rs}, v{rs}, v{rs}
    v_lshlrev_b32 v{rs}, 16, v{rs}
    v_rcp_f32 v{rs}, v{rs}''')
def MF(d,a,b,c): A(f'v_mfma_f32_16x16x32_bf16 {v(d,4)}, {v(a,4)}, {v(b,4)}, {c if c=="0" else v(c,4)}')
def wfrags(dst,addr,ns):
    for s in range(ns):
        for h in range(2): A(f'ds_read_b64_tr_b16 {v(dst+4*s+2*h,2)}, {addr} offset:{4096*s+512*h}')
def reduce16(a):
    for i in range(4): A(f'v_add_f32 v{a+i}, v{a+i}, v{a+4+i}')
    A(f'''v_permlane32_swap_b32 v{a}, v{a+2}
    v_permlane32_swap_b32 v{a+1}, v{a+3}
    v_add_f32 v{a}, v{a}, v{a+2}
    v_add_f32 v{a+1}, v{a+1}, v{a+3}
    v_permlane16_swap_b32 v{a}, v{a+1}
    v_add_f32 v{a}, v{a}, v{a+1}
    v_add_f32_dpp v{a}, v{a}, v{a} row_ror:4 {DP}
    v_add_f32_dpp v{a}, v{a}, v{a} row_ror:8 {DP}
    v_mov_b32 v{a+1}, v{a}
    v_permlane16_swap_b32 v{a}, v{a+1}
    v_cvt_pk_bf16_f32 v{a}, v{a}, v{a+1}
    v_and_b32 v{a+1}, 0xffff0000, v{a}
    v_lshlrev_b32 v{a}, 16, v{a}
    v_add_f32 v{a}, v{a}, {vX0}
    v_add_f32 v{a+1}, v{a+1}, {vX1}
    v_cvt_pk_bf16_f32 v{a}, v{a}, v{a+1}''')

A(f'''s_cmp_ge_u32 s2, 256
s_cbranch_scc1 L_END
s_load_dwordx16 s[4:19], s[0:1], 0
s_load_dwordx8 s[20:27], s[0:1], 64
v_lshrrev_b32 v1, 6, v0
v_and_b32 {vL}, 63, v0
v_readfirstlane_b32 {sW}, v1
v_mov_b32 {vFL}, {FL}
v_mov_b32 {vONE}, 1
v_mov_b32 {vTS}, 0
s_and_b32 {sX}, s2, 7
s_lshr_b32 {sJ}, s2, 3
s_mov_b32 {sB}, 0x40000
s_mul_i32 {sROT}, s2, {opt['ROTM']}
s_lshr_b32 {sROT}, {sROT}, {opt['ROTS']}
s_and_b32 {sROT}, {sROT}, 62
s_lshr_b32 {sT}, {sJ}, 3
s_lshl_b32 {sGAM}, {sT}, 3
s_add_u32 {sGAM}, {sGAM}, {sX}
s_cmp_ge_u32 {sGAM}, 28
s_cselect_b32 {sPH}, 1, 0
v_and_b32 {vC}, 15, {vL}
v_lshrrev_b32 {vG}, 4, {vL}
s_cmp_eq_u32 {sW}, 0
s_cbranch_scc1 L_LOADER
s_sub_u32 {sW}, {sW}, 1
v_lshlrev_b32 v20, 4, {vL}
v_mov_b32 v21, {OOB}
v_mov_b32 {vR0}, v21
v_mov_b32 {vR1}, v21
v_mov_b32 {vR2}, v21
s_mov_b32 {sA}, 0
s_mov_b64 s[52:53], 0
s_mov_b64 s[54:55], 0
s_mov_b32 {sU3}, 0
s_lshl_b32 {sT}, {sW}, 10
s_waitcnt lgkmcnt(0)''')
TS(0)
srd(40,4,8192)
A(f'''buffer_load_dwordx4 v[24:27], v20, {XS}, {sT} offen''')
srd(36,26,WSSZ); srd(44,22,8192)
A(f'''s_barrier
v_mov_b32 v28, -1
v_mov_b32 v29, -1
v_mov_b32 v30, -1
v_mov_b32 v31, -1''')
A(f'''v_lshlrev_b32 {vOst}, 13, {vC}
v_lshl_or_b32 {vOst}, {vG}, 3, {vOst}
v_and_b32 v22, 0x1c, {vL}
v_cmp_eq_u32 vcc, 0, v22
v_cndmask_b32 {vOst}, v21, {vOst}, vcc
s_lshl_b32 {sO}, {sX}, 15
s_add_u32 {sO}, {sO}, {OBUF}
s_and_b32 {sT}, {sJ}, 2
s_lshl_b32 {sT}, {sT}, 11
s_add_u32 {sO}, {sO}, {sT}
s_lshr_b32 {sT}, {sW}, 1
s_lshl_b32 {sT}, {sT}, 10
s_add_u32 {sO}, {sO}, {sT}
s_and_b32 {sT}, {sJ}, 1
s_lshl_b32 {sT}, {sT}, 9
s_add_u32 {sO}, {sO}, {sT}
s_lshr_b32 {sT}, {sJ}, 2
s_lshl_b32 {sT}, {sT}, 6
s_add_u32 {sO}, {sO}, {sT}
s_and_b32 {sT}, {sW}, 1
s_lshl_b32 {sT}, {sT}, 5
s_add_u32 {sO}, {sO}, {sT}
buffer_store_dwordx4 v[28:31], {vOst}, {WS}, {sO} offen sc1''')
A(f'''v_bfe_u32 v22, {vL}, 2, 2
v_lshl_add_u32 v22, {vG}, 3, v22
v_lshlrev_b32 {vWrd}, 7, v22
v_and_b32 v22, 3, {vL}
v_lshl_or_b32 {vWrd}, v22, 3, {vWrd}
v_bfe_u32 v22, {vL}, 3, 2
v_lshl_or_b32 {vWrd}, v22, 5, {vWrd}
s_cmp_ge_u32 {sW}, 4
s_cbranch_scc1 L_C4
s_cmp_eq_u32 {sW}, 2
s_cbranch_scc1 L_C2
s_cmp_eq_u32 {sW}, 3
s_cbranch_scc1 L_C3''')
A(f's_load_dwordx2 {TAG}, s[26:27], {EPOCH}')
A(f'''v_and_b32 v22, 7, {vC}
v_lshlrev_b32 {vR0}, 13, v22
v_lshrrev_b32 v22, 3, {vC}
v_lshl_or_b32 {vR0}, v22, 6, {vR0}
v_lshl_or_b32 {vR0}, {vG}, 4, {vR0}
s_and_b32 {sT}, {sJ}, 7
s_lshl_b32 {sA}, {sT}, 16
s_lshl_b32 {sT}, {sW}, 12
s_add_u32 {sA}, {sA}, {sT}
s_lshl_b32 {sT}, {sGAM}, 7
s_add_u32 {sA}, {sA}, {sT}
s_add_u32 {sC}, {sA}, {CBUF}
s_add_u32 {sA}, {sA}, {ABUF}
buffer_store_dwordx4 v[28:31], {vR0}, {WS}, {sA} offen sc1
buffer_store_dwordx4 v[28:31], {vR0}, {WS}, {sC} offen sc1
s_lshl_b32 {sT}, {sW}, 6
v_xor_b32 {vWrd}, {sT}, {vWrd}''')
A(f'''v_lshlrev_b32 {vR1}, 7, {vL}
v_cmp_gt_u32 vcc, 4, {vL}
v_cndmask_b32 {vR1}, v21, {vR1}, vcc
s_lshl_b32 {sU3}, {sX}, 9
s_and_b32 {sT}, {sJ}, 3
s_lshl_b32 {sT}, {sT}, 5
s_add_u32 {sU3}, {sU3}, {sT}
s_and_b32 {sT}, {sJ}, 28
s_add_u32 {sU3}, {sU3}, {sT}
s_add_u32 {sU3}, {sU3}, {LSE}
s_cmp_eq_u32 {sW}, 0
s_cbranch_scc0 L_CD
buffer_store_dword v28, {vR1}, {WS}, {sU3} offen sc1
s_waitcnt vmcnt(4)
s_branch L_CE
L_C3:
s_waitcnt vmcnt(1)
s_branch L_CE
L_C2:''')
A(f'''v_lshrrev_b32 v22, 2, {vL}
v_lshlrev_b32 {vR0}, 7, v22
v_and_b32 v23, 3, {vL}
v_lshl_or_b32 {vR0}, v23, 4, {vR0}
v_cmp_gt_u32 vcc, 12, v22
v_cndmask_b32 {vR1}, v21, {vR0}, vcc
s_lshl_b32 {sA}, {sX}, 16
s_lshr_b32 {sT}, {sJ}, 1
s_lshl_b32 {sT}, {sT}, 12
s_add_u32 {sA}, {sA}, {sT}
s_and_b32 {sT}, {sJ}, 1
s_lshl_b32 {sT}, {sT}, 6
s_add_u32 {sA}, {sA}, {sT}
s_add_u32 {sC}, {sA}, {CBUF}
s_add_u32 {sA}, {sA}, {ABUF}
v_lshlrev_b32 {vR2}, 3, v23
v_lshrrev_b32 v22, 5, {vL}
v_lshl_or_b32 {vR2}, v22, 2, {vR2}
s_lshr_b32 {sT}, {sJ}, 2
s_lshl_b32 {sT}, {sT}, 10
s_lshl_b32 {sT2}, {sX}, 7
s_add_u32 {sT}, {sT}, {sT2}
s_and_b32 {sT2}, {sJ}, 3
s_lshl_b32 {sT2}, {sT2}, 5
s_add_u32 {sT}, {sT}, {sT2}
v_add_u32 {vR2}, {sT}, {vR2}
buffer_load_dword {vX0}, {vR2}, {XS}, 0 offen
v_and_b32 v22, 0x1c, {vL}
v_cmp_eq_u32 vcc, 0, v22
v_cndmask_b32 {vR2}, v21, {vR2}, vcc
s_mov_b32 {sU3}, {HBUF}
buffer_store_dword v28, {vR2}, {WS}, {sU3} offen sc1
s_branch L_CD
L_C4:''')
A(f'''v_lshlrev_b32 v22, 4, {vG}
v_lshl_or_b32 {vR0}, {vC}, 8, v22
v_lshl_or_b32 {vR2}, {vC}, 13, v22
v_cmp_gt_u32 vcc, 8, {vC}
v_cndmask_b32 {vR0}, v21, {vR0}, vcc
v_cndmask_b32 {vR2}, v21, {vR2}, vcc
v_cmp_eq_u32 vcc, 0, {vC}
v_cndmask_b32 {vR1}, v21, v22, vcc
s_sub_u32 {sT3}, {sW}, 4
s_lshl_b32 {sT}, {sGAM}, 3
s_and_b32 {sT2}, {sJ}, 7
s_add_u32 {sT}, {sT}, {sT2}
s_lshl_b32 {sG}, {sT}, 11
s_lshl_b32 {sCS}, {sT}, 8
s_lshl_b32 {sT}, {sT3}, 6
s_add_u32 {sG}, {sG}, {sT}
s_add_u32 {sCS}, {sCS}, {sT}
s_add_u32 {sG}, {sG}, {GBUF}
s_add_u32 {sCS}, {sCS}, {CSUM}
s_lshl_b32 {sQ}, {sX}, 16
s_add_u32 {sQ}, {sQ}, {sT}
s_lshl_b32 {sT}, {sJ}, 8
s_add_u32 {sQ}, {sQ}, {sT}
s_add_u32 {sQ}, {sQ}, {QBUF}
buffer_store_dwordx4 v[28:31], {vR0}, {WS}, {sG} offen sc1
buffer_store_dwordx4 v[28:31], {vR1}, {WS}, {sCS} offen sc1
s_lshl_b32 {sT}, {sT3}, 5
v_xor_b32 {vWrd}, {sT}, {vWrd}
L_CD:''')
A('s_waitcnt vmcnt(3)\nL_CE:')
TS(1)
unpack8(24,32)
stats(32,40,41,42,43)
for i in range(4):
    A(f'''v_sub_f32 v{32+2*i}, v{32+2*i}, v40
    v_sub_f32 v{33+2*i}, v{33+2*i}, v40
    v_cvt_pk_bf16_f32 v{24+i}, v{32+2*i}, v{33+2*i}''')
unpack8(24,32)
for i in range(8): A(f'v_mul_f32 v{32+i}, v{32+i}, v41')
for i in range(4): A(f'v_cvt_pk_bf16_f32 v{24+i}, v{32+2*i}, v{33+2*i}')
A(f'''s_mul_i32 {sT}, {sW}, 1056
s_add_u32 {sT}, {sT}, {XN}
v_add_u32 v22, {sT}, v20
ds_write_b128 v22, v[24:27]''')
sig(CXN)
TS(2)
A(f'''s_cmp_lt_u32 {sW}, 4
s_cbranch_scc1 L_QD''')
A(f'''v_and_b32 v22, 7, {vC}
v_mul_u32_u24 v22, 1056, v22
v_lshl_add_u32 v22, {vG}, 4, v22
s_lshr_b32 {sT2}, {sJ}, 3
s_lshl_b32 {sT2}, {sT2}, 8
s_add_u32 {sT2}, {sT2}, {XN}
v_add_u32 v22, {sT2}, v22
v_add_u32 v23, {WB}, {vWrd}''')
lwait(CXN,8)
for s in range(4): A(f'ds_read_b128 {v(48+4*s,4)}, v22 offset:{64*s}')
lwait(PROG,T_WQ)
TS(3)
wfrags(64,'v23',4)
A('s_waitcnt lgkmcnt(0)')
sig(WQD)
for s in range(4): MF(44,64+4*s,48+4*s,'0' if s==0 else 44)
A(f'buffer_store_dwordx4 v[44:47], {vR2}, {WS}, {sQ} offen sc1')
A('L_QD:')
A('s_waitcnt vmcnt(0)')
sig(CPUB)
TS(4)
A(f'''s_cmp_ge_u32 {sW}, 2
s_cbranch_scc1 L_QK
s_waitcnt lgkmcnt(0)
s_add_u32 s48, s48, 1
s_addc_u32 s49, s49, 0''')
lwait(CPUB,8)
A(f'''s_cmp_eq_u32 {sW}, 1
s_cbranch_scc1 L_ALL''')
A(f'''v_mov_b32 v24, s48
v_mov_b32 v25, s49
s_lshl_b32 {sT2}, {sX}, 8
s_add_u32 {sT2}, {sT2}, {FLAGS}
s_lshl_b32 {sT}, {sJ}, 3
v_mov_b32 v22, {sT}
s_mov_b64 exec, 1
buffer_store_dwordx2 v[24:25], v22, {WS}, {sT2} offen sc1
s_mov_b64 exec, -1
v_and_b32 v22, 31, {vL}
v_lshlrev_b32 v22, 3, v22
s_waitcnt vmcnt(0)''')
TS(5)
A(f'''L_GP:
buffer_load_dwordx2 v[26:27], v22, {WS}, {sT2} offen sc1
s_waitcnt vmcnt(0)
v_cmp_ne_u64 vcc, {TAG}, v[26:27]
s_cbranch_vccz L_GPD
s_sleep 2
s_sub_u32 {sB}, {sB}, 8
s_cmp_gt_i32 {sB}, 0
s_cbranch_scc1 L_GP
L_GPD:''')
TS(6)
A(f'''s_lshl_b32 {sT}, {sX}, 16
s_lshr_b32 {sT2}, {sJ}, 2
s_lshl_b32 {sT2}, {sT2}, 13
s_add_u32 {sT}, {sT}, {sT2}
s_add_u32 {sT}, {sT}, {QBUF}
s_add_u32 {sT2}, {sT}, 4096''')
for n in range(8): A(f'buffer_load_dwordx4 {v(48+4*n,4)}, v20, {WS}, {sT if n<4 else sT2} offen offset:{1024*(n&3)} sc1')
A(f'''v_lshrrev_b32 v22, 5, {vL}
v_mul_u32_u24 v22, 288, v22
v_and_b32 v23, 31, {vL}
v_lshl_add_u32 v22, v23, 3, v22
v_add_u32 v22, {QL}, v22
s_waitcnt vmcnt(0)''')
for i in range(8):
    A(f'v_add_f32 v{48+i}, v{48+i}, v{56+i}\nv_add_f32 v{64+i}, v{64+i}, v{72+i}')
for i in range(8): A(f'v_add_f32 v{48+i}, v{48+i}, v{64+i}')
for i in range(4): A(f'v_cvt_pk_bf16_f32 v{56+i}, v{48+2*i}, v{49+2*i}')
A('ds_write_b64 v22, v[56:57]\nds_write_b64 v22, v[58:59] offset:576')
sig(QRDY)
TS(7)
A('s_branch L_QK')
A(f'''L_ALL:
s_mov_b32 {sT2}, {FLAGS}
L_AP:
buffer_load_dwordx4 v[24:27], v20, {WS}, {sT2} offen sc1
buffer_load_dwordx4 v[28:31], v20, {WS}, {sT2} offen offset:1024 sc1
s_waitcnt vmcnt(0)
v_cmp_ne_u64 vcc, {TAG}, v[24:25]
v_cmp_ne_u64 s[60:61], {TAG}, v[26:27]
v_cmp_ne_u64 s[62:63], {TAG}, v[28:29]
v_cmp_ne_u64 s[64:65], {TAG}, v[30:31]
s_or_b64 vcc, vcc, s[60:61]
s_or_b64 s[62:63], s[62:63], s[64:65]
s_or_b64 vcc, vcc, s[62:63]
s_cbranch_scc0 L_APD
s_sleep 8
s_sub_u32 {sB}, {sB}, 8
s_cmp_gt_i32 {sB}, 0
s_cbranch_scc1 L_AP
L_APD:''')
sig(ALLOK)
TS(6)
A(f'''s_cmp_lg_u32 s2, 0
s_cbranch_scc1 L_QK
v_mov_b32 v24, s48
v_mov_b32 v25, s49
v_mov_b32 v22, {EPOCH}
s_mov_b64 exec, 1
buffer_store_dwordx2 v[24:25], v22, {WS}, 0 offen sc1
s_mov_b64 exec, -1
L_QK:''')
A(f'''v_and_b32 v22, 7, {vC}
v_lshlrev_b32 v22, 1, v22
v_xor_b32 v22, v22, {vG}
v_lshlrev_b32 v22, 4, v22
v_lshl_or_b32 v22, {vC}, 8, v22
s_lshl_b32 {sT2}, {sW}, 13
v_add_u32 v22, {sT2}, v22
v_xor_b32 v23, 64, v22
v_xor_b32 v24, 0x80, v22
v_xor_b32 v25, 0xc0, v22
v_and_b32 v26, 3, {vC}
v_mul_u32_u24 v27, 288, v26
v_lshl_add_u32 v27, {vG}, 4, v27
v_add_u32 v27, {QL}, v27
v_lshlrev_b32 v26, 5, v26
v_add_u32 v26, {MX}, v26
s_lshl_b32 {sT2}, {sW}, 2
v_add_u32 v28, {sT2}, v26''')
lwait(PROG,T_K)
TS(8)
for h in range(2):
    for s in range(4): A(f'ds_read_b128 {v(64+16*h+4*s,4)}, v{22+s} offset:{4096*h}')
lwait(QRDY,1)
TS(9)
for s in range(4): A(f'ds_read_b128 {v(48+4*s,4)}, v27 offset:{64*s}')
A('s_waitcnt lgkmcnt(0)')
for s in range(4):
    for h in range(2): MF(32+4*h,64+16*h+4*s,48+4*s,'0' if s==0 else 32+4*h)
for i in range(4): A(f'v_cvt_pk_bf16_f32 v{40+i}, v{32+2*i}, v{33+2*i}')
unpack8(40,32)
for i in range(8): A(f'v_mul_f32 v{32+i}, 0x3db504f3, v{32+i}')
for i in range(4): A(f'v_cvt_pk_bf16_f32 v{40+i}, v{32+2*i}, v{33+2*i}')
unpack8(40,32)
A('''v_max3_f32 v44, v32, v33, v34
v_max3_f32 v45, v35, v36, v37
v_max3_f32 v44, v44, v38, v39
v_max_f32 v44, v44, v45''')
xrow('v44','v45','v_max_f32')
A(f'''s_mov_b64 exec, 15
ds_write_b32 v28, v44
s_mov_b64 exec, 1
ds_add_u32 {vFL}, {vONE} offset:{CMX}
s_mov_b64 exec, -1''')
lwait(CMX,8,0)
A(f'''ds_read_b128 v[48:51], v26
ds_read_b128 v[52:55], v26 offset:16
s_mov_b32 {sT2}, 0x3fb8aa3b
s_waitcnt lgkmcnt(0)
v_max3_f32 v44, v48, v49, v50
v_max3_f32 v45, v51, v52, v53
v_max3_f32 v44, v44, v54, v55
v_max_f32 v44, v44, v45
v_mul_f32 v44, {sT2}, v44''')
for i in range(8): A(f'v_fma_f32 v{32+i}, v{32+i}, {sT2}, -v44')
for i in range(8): A(f'v_exp_f32 v{32+i}, v{32+i}')
for i in range(4): A(f'v_cvt_pk_bf16_f32 v{40+i}, v{32+2*i}, v{33+2*i}')
A(f'''s_lshl_b32 {sT2}, {sW}, 10
s_add_u32 {sT2}, {sT2}, {PB}
v_add_u32 v29, {sT2}, v20
ds_write_b128 v29, v[40:43]
v_add_f32 v46, v32, v33
v_add_f32 v45, v34, v35
v_add_f32 v47, v36, v37
v_add_f32 v46, v46, v45
v_add_f32 v45, v38, v39
v_add_f32 v47, v47, v45
v_add_f32 v46, v46, v47''')
xrow('v46','v45','v_add_f32')
A(f'''s_mov_b64 exec, 15
ds_write_b32 v28, v46 offset:{LS-MX}
s_mov_b64 exec, 1
ds_add_u32 {vFL}, {vONE} offset:{CP}
s_mov_b64 exec, -1''')
A(f'''v_lshrrev_b32 v22, 2, {vL}
v_and_b32 v23, 7, v22
v_xor_b32 v23, {sW}, v23
v_lshlrev_b32 v23, 5, v23
v_lshl_or_b32 v22, v22, 8, v23
v_and_b32 v23, 3, {vL}
v_lshl_or_b32 v22, v23, 3, v22
v_add_u32 v22, {VB}, v22
v_add_u32 v23, {PB}, v20
s_add_u32 {sU}, {sROT}, 7
s_lshr_b32 {sU}, {sU}, 3
s_sub_u32 {sU2}, 0, {sROT}
s_and_b32 {sU2}, {sU2}, 7
s_add_u32 {sU2}, {sU2}, {T_V0+8}
v_mov_b32 v32, 0
v_mov_b32 v33, 0
v_mov_b32 v34, 0
v_mov_b32 v35, 0''')
lwait(CP,8,0)
TS(10)
A(f'''ds_read_b128 v[48:51], v26 offset:{LS-MX}
ds_read_b128 v[52:55], v26 offset:{LS-MX+16}
s_waitcnt lgkmcnt(0)
v_add_f32 v48, v48, v49
v_add_f32 v50, v50, v51
v_add_f32 v52, v52, v53
v_add_f32 v54, v54, v55
v_add_f32 v48, v48, v50
v_add_f32 v52, v52, v54
v_add_f32 v48, v48, v52
v_rcp_f32 {vRL}, v48
s_cmp_ge_u32 {sW}, 2
s_cbranch_scc1 L_PV
v_log_f32 v48, v48
v_add_u32 v24, {WB}, {vWrd}
v_add_f32 v48, v48, v44
v_xor_b32 v25, 32, v24
v_min_u32 v48, -2, v48
s_cmp_eq_u32 {sW}, 1
s_cbranch_scc1 L_NL
buffer_store_dword v48, {vR1}, {WS}, {sU3} offen sc1
L_NL:''')
lwait(PROG,T_WO)
wfrags(64,'v24',4); wfrags(80,'v25',4)
A(f'''L_PV:
s_mov_b32 {sT3}, 8
L_PVL:
s_and_b32 {sU}, {sU}, 7
s_lshl_b32 {sT2}, {sU}, 10
v_add_u32 v24, {sT2}, v23
s_lshl_b32 {sT2}, {sU}, 13
v_add_u32 v25, {sT2}, v22
ds_read_b128 v[40:43], v24
s_min_u32 {sU2}, {sU2}, {T_V0+64}''')
lwait(PROG,sU2)
A(f'''ds_read_b64_tr_b16 v[36:37], v25
ds_read_b64_tr_b16 v[38:39], v25 offset:4096
s_add_u32 {sU}, {sU}, 1
s_add_u32 {sU2}, {sU2}, 8
s_sub_u32 {sT3}, {sT3}, 1
s_cmp_lg_u32 {sT3}, 0
s_waitcnt lgkmcnt(0)''')
MF(32,36,40,32)
A('s_cbranch_scc1 L_PVL')
TS(11)
for i in range(4): A(f'v_mul_f32 v{32+i}, v{32+i}, {vRL}')
A(f'''v_cvt_pk_bf16_f32 v36, v32, v33
v_cvt_pk_bf16_f32 v37, v34, v35
v_min_u32 v36, -2, v36
v_min_u32 v37, -2, v37
v_mov_b32 v38, v36
v_mov_b32 v39, v37
v_permlane16_swap_b32 v36, v38
v_permlane16_swap_b32 v37, v39
buffer_store_dwordx4 v[36:39], {vOst}, {WS}, {sO} offen sc1
s_cmp_ge_u32 {sW}, 4
s_cbranch_scc1 L_GU
s_cmp_eq_u32 {sW}, 2
s_cbranch_scc1 L_RED
s_cmp_eq_u32 {sW}, 3
s_cbranch_scc1 L_W3''')
A(f'''v_lshlrev_b32 v22, 6, {vC}
v_lshl_or_b32 v22, {vG}, 4, v22
v_lshlrev_b32 v23, 2, {vC}
s_lshl_b32 {sT2}, {sX}, 2
s_lshr_b32 {sT}, {sJ}, 3
s_add_u32 {sT2}, {sT2}, {sT}
s_lshl_b32 {sU}, {sT2}, 13
s_add_u32 {sU}, {sU}, {OBUF}
s_add_u32 {sU2}, {sU}, 4096
s_lshl_b32 {sT2}, {sT2}, 7
s_add_u32 {sT2}, {sT2}, {LSE}
s_waitcnt vmcnt(0)''')
TS(12)
ld=f'buffer_load_dword v24, v23, {WS}, {sT2} offen sc1\nbuffer_load_dword v25, v23, {WS}, {sT2} offen offset:64 sc1\n'
for s in range(4):
    for t in range(2): ld+=f'buffer_load_dwordx4 {v(96+16*t+4*s,4)}, v22, {WS}, {sU2 if t else sU} offen offset:{1024*s} sc1\n'
gpoll(ld,[24,25]+list(range(96,128)))
TS(13)
W=[f'v_max_f32 v26, v24, v25', f'v_max_f32_dpp v26, v26, v26 row_ror:8 {DP}','v_sub_f32 v24, v24, v26','v_sub_f32 v25, v25, v26',
   'v_exp_f32 v24, v24','v_exp_f32 v25, v25','v_add_f32 v26, v24, v25',f'v_add_f32_dpp v26, v26, v26 row_ror:8 {DP}','v_rcp_f32 v26, v26',
   'v_mul_f32 v24, v24, v26','v_mul_f32 v25, v25, v26']
for s in range(4):
    for m in range(2):
        for t in range(2):
            MF(32+8*m+4*t,64+16*m+4*s,96+16*t+4*s,'0' if s==0 else 32+8*m+4*t)
            if W: A(W.pop(0))
for m in range(2):
    for i in range(4): A(f'v_mul_f32 v{32+8*m+i}, v{32+8*m+i}, v24')
for m in range(2):
    for i in range(4): A(f'v_fmac_f32 v{32+8*m+i}, v{36+8*m+i}, v25')
for i in range(4): A(f'v_add_f32_dpp v{48+i}, v{32+i}, v{32+i} row_ror:8 row_mask:0xf bank_mask:0x3')
for i in range(4): A(f'v_add_f32_dpp v{48+i}, v{40+i}, v{40+i} row_ror:8 row_mask:0xf bank_mask:0xc')
for i in range(4): A(f'v_min_u32 v{48+i}, -2, v{48+i}')
A(f'''buffer_store_dwordx4 v[48:51], {vR0}, {WS}, {sA} offen sc1
v_add_u32 v24, {DNB}, {vWrd}
v_xor_b32 v25, 32, v24
s_waitcnt vmcnt(0)''')
sig(CA)
TS(14)
A(f'''s_cmp_eq_u32 {sPH}, 1
s_cbranch_scc1 L_FIN''')
lwait(PROG,T_DN)
wfrags(64,'v24',2); wfrags(72,'v25',2)
A('s_branch L_FFN')
A(f'''L_RED:
v_and_b32 {vX1}, 0xffff0000, {vX0}
v_lshlrev_b32 {vX0}, 16, {vX0}''')
lwait(ALLOK,1)
lwait(CA,2)
TS(12)
gpoll(f'buffer_load_dwordx4 v[32:35], {vR0}, {WS}, {sA} offen sc1\nbuffer_load_dwordx4 v[36:39], {vR0}, {WS}, {sA} offen offset:2048 sc1',range(32,40))
TS(13)
reduce16(32)
A(f'''v_min_u32 v32, -2, v32
buffer_store_dword v32, {vR2}, {WS}, {sU3} offen sc1
v_and_b32 {vX1}, 0xffff0000, v32
v_lshlrev_b32 {vX0}, 16, v32
s_waitcnt vmcnt(0)''')
sig(HGO)
TS(14)
A(f'''s_cmp_eq_u32 {sPH}, 1
s_cbranch_scc0 L_FFN
s_sleep 24
s_branch L_RC
L_W3:
s_cmp_eq_u32 {sPH}, 1
s_cbranch_scc1 L_FIN
L_FFN:''')
A(f'''s_lshl_b32 {sT2}, {sW}, 10
s_add_u32 {sT2}, {sT2}, {HBUF}''')
lwait(HGO,1)
gpoll(f'buffer_load_dwordx4 v[24:27], v20, {WS}, {sT2} offen sc1',range(24,28))
TS(15)
A('s_branch L_ST')
A(f'''L_GU:
s_cmp_eq_u32 {sPH}, 1
s_cbranch_scc1 L_FIN
v_mov_b32 v48, 0x3f803f80
v_mov_b32 v49, v48
v_mov_b32 v50, v48
v_mov_b32 v51, v48
v_lshlrev_b32 v22, 4, {vG}
v_lshl_or_b32 v22, {vC}, 10, v22
v_cmp_gt_u32 vcc, 8, {vC}
v_cndmask_b32 v22, v21, v22, vcc
s_lshl_b32 {sT2}, {sW}, 10
s_add_u32 {sT2}, {sT2}, {HBUF}
s_and_b32 {sU}, {sJ}, 6
s_lshl_b32 {sU}, {sU}, 7
s_add_u32 {sU}, {sU}, {HBUF}''')
lwait(PROG,T_GU)
TS(12)
wfrags(64,vWrd,4)
A('s_waitcnt lgkmcnt(0)')
for s in range(4): MF(44,64+4*s,48,'0' if s==0 else 44)
for i in range(4): A(f'v_min_u32 v{44+i}, -2, v{44+i}')
A(f'buffer_store_dwordx4 v[44:47], {vR1}, {WS}, {sCS} offen sc1')
lwait(HGO,1)
TS(13)
ld=''.join(f'buffer_load_dwordx4 {v(48+4*s,4)}, v22, {WS}, {sU} offen offset:{64*s} sc1\n' for s in range(4))
ld+=f'buffer_load_dwordx4 v[24:27], v20, {WS}, {sT2} offen sc1'
gpoll(ld,list(range(48,64))+list(range(24,28)))
TS(14)
for s in range(4): MF(40,64+4*s,48+4*s,'0' if s==0 else 40)
for i in range(4): A(f'v_min_u32 v{40+i}, -2, v{40+i}')
A(f'buffer_store_dwordx4 v[40:43], {vR0}, {WS}, {sG} offen sc1')
TS(15)
A(f'''L_ST:
v_lshlrev_b32 v22, 2, {vL}
s_lshl_b32 {sT2}, {sGAM}, 11
s_add_u32 {sT2}, {sT2}, {CSUM}''')
unpack8(24,32)
stats(32,44,45,46,47)
gpoll(''.join(f'buffer_load_dword v{48+i}, v22, {WS}, {sT2} offen offset:{256*i} sc1\n' for i in range(8)),range(48,56))
A(f'''s_cmp_lt_u32 {sW}, 4
s_cbranch_scc1 L_NS''')
sig(CG)
A(f'''L_NS:
v_add_f32 v48, v48, v50
v_add_f32 v49, v49, v51
v_add_f32 v52, v52, v54
v_add_f32 v53, v53, v55
v_add_f32 v48, v48, v52
v_add_f32 v49, v49, v53
v_mul_f32 v46, v48, v44
v_mul_f32 v47, v49, v44
s_lshl_b32 {sT2}, {sGAM}, 14
s_lshl_b32 {sT}, {sW}, 8
s_add_u32 {sT2}, {sT2}, {sT}
s_add_u32 {sT2}, {sT2}, {GBUF}
s_add_u32 {sU}, {sT2}, 4096
s_add_u32 {sU2}, {sT2}, 8192
s_add_u32 {sT3}, {sT2}, 12288
s_mul_i32 {sT}, {sW}, 160
s_add_u32 {sT}, {sT}, {HH}
v_lshl_add_u32 v23, {vL}, 1, {sT}
v_mul_f32 v44, 0xbfb8aa3b, v45
v_and_b32 v24, 7, {vC}
v_mul_u32_u24 v24, 160, v24
v_lshl_add_u32 v24, {vG}, 4, v24
v_add_u32 v24, {HH}, v24''')
TS(16)
lwait(CG,4,0)
TS(17)
gpoll(''.join(f'buffer_load_dword v{48+i}, v22, {WS}, {[sT2,sU,sU2,sT3][i>>1]} offen offset:{2048*(i&1)} sc1\n' for i in range(8)),range(48,56))
TS(18)
A(f'''v_add_f32 v48, v48, v50
v_add_f32 v52, v52, v54
v_add_f32 v49, v49, v51
v_add_f32 v48, v48, v52
v_add_f32 v53, v53, v55
v_sub_f32 v48, v48, v46
v_add_f32 v49, v49, v53
v_mul_f32 v48, v48, v44
v_sub_f32 v49, v49, v47
v_exp_f32 v48, v48
v_mul_f32 v49, v49, v45
v_add_f32 v48, 1.0, v48
v_rcp_f32 v48, v48
v_mul_f32 v48, v48, v49
v_cvt_pk_bf16_f32 v48, v48, v48
ds_write_b16 v23, v48
s_waitcnt lgkmcnt(0)
s_barrier
s_cmp_eq_u32 {sW}, 2
s_cbranch_scc1 L_RC0
s_cmp_ge_u32 {sW}, 2
s_cbranch_scc1 L_FIN
ds_read_b128 v[48:51], v24
ds_read_b128 v[52:55], v24 offset:64
s_waitcnt lgkmcnt(0)''')
for s in range(2):
    for m in range(2): MF(32+4*m,64+8*m+4*s,48+4*s,'0' if s==0 else 32+4*m)
for i in range(4): A(f'v_mov_b32_dpp v{32+i}, v{36+i} quad_perm:[0,1,2,3] row_mask:0xf bank_mask:0xc')
for i in range(4): A(f'v_min_u32 v{32+i}, -2, v{32+i}')
A(f'''buffer_store_dwordx4 v[32:35], {vR0}, {WS}, {sC} offen sc1
s_waitcnt vmcnt(0)''')
sig(CC)
TS(19)
A('s_branch L_FIN\nL_RC0:')
lwait(CC,2,0)
A('L_RC:')
TS(19)
gpoll(f'buffer_load_dwordx4 v[32:35], {vR0}, {WS}, {sC} offen sc1\nbuffer_load_dwordx4 v[36:39], {vR1}, {WS}, {sC} offen offset:2048 sc1',range(32,40))
TS(20)
reduce16(32)
A(f'buffer_store_dword v32, {vR2}, {OS}, 0 offen')
A('L_FIN:')
if PROF:
    A('s_waitcnt vmcnt(0)')
    TS(21)
    A(f'''v_writelane_b32 {vTS}, {sB}, 63
    s_mul_i32 {sT}, s2, 9
    s_add_u32 {sT}, {sT}, {sW}
    s_add_u32 {sT}, {sT}, 1
    s_lshl_b32 {sT}, {sT}, 8
    s_add_u32 {sT}, {sT}, {DBG}
    v_lshlrev_b32 v22, 2, {vL}
    buffer_store_dword {vTS}, v22, {WS}, {sT} offen''')
A('s_endpgm')
A(f'''L_LOADER:
s_setprio 3
v_lshl_add_u32 v20, {vL}, 2, {vFL}
v_mov_b32 v21, 0
s_mov_b64 exec, 0xffff
ds_write_b32 v20, v21
s_mov_b64 exec, -1
v_lshlrev_b32 v20, 1, {vG}
v_xor_b32 v20, v20, {vC}
v_lshlrev_b32 v20, 4, v20
v_lshl_or_b32 v20, {vG}, 8, v20
v_xor_b32 v21, 0x80, v20
v_and_b32 v22, 1, {vG}
v_lshlrev_b32 v22, 1, v22
v_and_b32 v23, 7, {vL}
v_xor_b32 v22, v22, v23
v_lshlrev_b32 v22, 4, v22
v_xor_b32 v23, 64, v22
v_lshrrev_b32 v30, 3, {vL}
v_lshl_or_b32 v24, v30, 13, v22
v_lshl_or_b32 v25, v30, 13, v23
v_add_u32 v25, {8*8192-1024}, v25
v_lshl_or_b32 v26, v30, 10, v22
v_lshl_or_b32 v27, v30, 10, v23
v_add_u32 v27, {8*1024-1024}, v27
v_mul_u32_u24 v30, 3584, v30
v_add_u32 v28, v30, v22
v_add_u32 v29, v30, v23
v_add_u32 v29, {8*3584-1024}, v29
v_mov_b32 v31, 0
s_lshr_b32 {sT}, {sJ}, 3
s_and_b32 {sT2}, {sJ}, 7
s_lshl_b32 s60, {sT}, 20
s_lshl_b32 s61, {sX}, 10
s_add_u32 s60, s60, s61
s_lshl_b32 s61, {sT2}, 7
s_add_u32 s60, s60, s61
s_lshl_b32 s62, {sX}, 19
s_lshl_b32 s63, {sT}, 17
s_add_u32 s62, s62, s63
s_add_u32 s62, s62, s61
s_lshl_b32 s63, {sGAM}, 16
s_add_u32 s63, s63, s61
s_lshr_b32 s64, {sT2}, 1
s_mul_i32 s64, s64, {128*3584}
s_lshl_b32 s65, {sGAM}, 7
s_add_u32 s64, s64, s65
s_lshr_b32 s65, {sJ}, 2
s_lshl_b32 s65, s65, 3
s_add_u32 s65, s65, {sX}
s_lshl_b32 s65, s65, 20
s_and_b32 s66, {sJ}, 3
s_lshl_b32 s66, s66, 16
s_add_u32 s65, s65, s66
s_add_u32 s65, s65, {3072*256}
s_waitcnt lgkmcnt(0)''')
srd(44,10,4<<20)
def LTS(n):
    if PROF: A(f's_memrealtime s[70:71]\ns_waitcnt lgkmcnt(0)\nv_writelane_b32 {vTS}, s70, {n}')
LTS(0)
def pub(): A(f'v_add_u32 v31, 2, v31\ns_waitcnt vmcnt({D})\nds_write_b32 {vFL}, v31 offset:{PROG}')
def wseg(srdn,so,ve,vo,stride,ldsb,n):
    a=lab('S')
    A(f'''s_mov_b32 m0, {ldsb}
    {a}:
    buffer_load_dwordx4 {ve}, s[{srdn}:{srdn+3}], {so} offen nt lds
    buffer_load_dwordx4 {vo}, s[{srdn}:{srdn+3}], {so} offen offset:1024 nt lds
    s_add_u32 m0, m0, 2048
    s_add_u32 {so}, {so}, {16*stride}''')
    pub()
    A(f's_cmp_lg_u32 m0, {ldsb+n*1024}\ns_cbranch_scc1 {a}')
def kvseg(srdn,ldsb):
    a=lab('S')
    A(f'''s_lshl_b32 s66, {sROT}, 10
    s_mov_b32 s67, 32
    {a}:
    s_add_u32 m0, s66, {ldsb}
    s_add_u32 s68, s66, s65
    buffer_load_dwordx4 v20, s[{srdn}:{srdn+3}], s68 offen nt lds
    buffer_load_dwordx4 v21, s[{srdn}:{srdn+3}], s68 offen offset:1024 nt lds
    s_add_u32 s66, s66, 2048
    s_and_b32 s66, s66, 0xffff
    s_sub_u32 s67, s67, 1''')
    pub()
    A(f's_cmp_lg_u32 s67, 0\ns_cbranch_scc1 {a}')
wseg(44,'s60','v24','v25',8192,WB,16)
srd(36,6,64<<20)
A('s_barrier')
srd(40,8,64<<20); srd(48,12,4<<20); srd(72,20,1792*1024)
A(f'''s_and_b32 {sT}, {sJ}, 1
s_cmp_eq_u32 {sT}, 0
s_cselect_b32 s52, s16, s18
s_cselect_b32 s53, s17, s19
s_mov_b32 s54, {1792*1024}
s_mov_b32 s55, 0x20000''')
kvseg(36,KB)
LTS(1)
lwait(WQD,4)
wseg(48,'s62','v26','v27',1024,WB,16)
LTS(2)
kvseg(40,VB)
LTS(3)
A(f's_cmp_eq_u32 {sPH}, 1\ns_cbranch_scc1 L_DRAIN')
lwait(CP,8)
wseg(52,'s64','v28','v29',3584,GUB,16)
wseg(72,'s63','v26','v27',1024,DNB,8)
LTS(4)
A('L_DRAIN:')
for k in range(D-2,-1,-2): A(f'v_add_u32 v31, 2, v31\ns_waitcnt vmcnt({k})\nds_write_b32 {vFL}, v31 offset:{PROG}')
if PROF:
    LTS(5)
    srd(36,26,WSSZ)
    A(f'''v_writelane_b32 {vTS}, {sB}, 63
    s_mul_i32 {sT}, s2, 9
    s_lshl_b32 {sT}, {sT}, 8
    s_add_u32 {sT}, {sT}, {DBG}
    v_lshlrev_b32 v22, 2, {vL}
    buffer_store_dword {vTS}, v22, {WS}, {sT} offen''')
A('s_waitcnt lgkmcnt(0)')
A('L_END:\ns_endpgm')

ref=open('cdna_kernels/'+KN+'.s.ref').read().split('\n')
hdr=[l for l in ref if l.startswith(';') and '@launch' not in l]
hdr.append('; @launch grid=(256,1,1) block=(576,1,1) lds=163840')
body=hazard_pass(L)
txt='\n'.join(hdr)+f'''
.amdgcn_target "amdgcn-amd-amdhsa--gfx950"
.text
.globl {KN}_kernel
.p2align 8
.type {KN}_kernel,@function
{KN}_kernel:
'''+'\n'.join(body)+f'''
.section .rodata,"a"
.p2align 6
.amdhsa_kernel {KN}_kernel
  .amdhsa_next_free_vgpr 128
  .amdhsa_next_free_sgpr 96
  .amdhsa_accum_offset 128
  .amdhsa_float_denorm_mode_32 3
  .amdhsa_group_segment_fixed_size 0
  .amdhsa_kernarg_size 96
  .amdhsa_user_sgpr_count 2
  .amdhsa_user_sgpr_kernarg_segment_ptr 1
  .amdhsa_system_sgpr_workgroup_id_x 1
.end_amdhsa_kernel
'''
open(sys.argv[1],'w').write(txt)
```
